```python
import torch

def _softmax(x, axis=-1):
    return torch.softmax(x, dim=axis)
def _gelu(x):
    return torch.nn.functional.gelu(x, approximate="tanh")
def _silu(x):
    return torch.nn.functional.silu(x)
def _sigmoid(x):
    return torch.sigmoid(x)
def _layernorm(x, axis=-1, eps=1e-5):
    m = x.mean(dim=axis, keepdim=True)
    v = x.var(dim=axis, keepdim=True, unbiased=False)
    return (x - m) / torch.sqrt(v + eps)
def _scatter_add(tgt, idx, src, axis=0):
    return tgt.clone().index_add_(axis, idx, src)
def _segment_sum(src, seg, n):
    out = torch.zeros((n,) + src.shape[1:], dtype=src.dtype)
    return out.index_add_(0, seg, src)
def _pad(x, pw):
    flat = tuple(v for pair in reversed(pw) for v in pair)
    return torch.nn.functional.pad(x, flat)

kernel_name = 'standalone__gqa_softmax__decode'

def setup_inputs():

    _w = (lambda a: (lambda t: t.to(torch.bfloat16) if t.is_floating_point() else t)(torch.as_tensor(a)))
    B, Hq, Hkv, Sq, Sk, D = 2, 32, 4, 1, 32768, 128
    return {
        "q": _w((lambda *s: torch.randn(*s, dtype=torch.bfloat16) * 0.8)(B, Hq, Sq, D)),
        "k": _w((lambda *s: torch.randn(*s, dtype=torch.bfloat16) * 0.8)(B, Hkv, Sk, D)),
        "v": _w((lambda *s: torch.randn(*s, dtype=torch.bfloat16) * 0.05)(B, Hkv, Sk, D)),
    }

def reference(q, k, v):
    B, Hq, Sq, D = q.shape
    Hkv = k.shape[1]
    rep = Hq // Hkv
    k = (lambda x, n, axis: torch.repeat_interleave(x, n, dim=axis))(k, rep, axis=1)
    v = (lambda x, n, axis: torch.repeat_interleave(x, n, dim=axis))(v, rep, axis=1)
    scale = D ** -0.5
    scores = torch.einsum("bhqd,bhkd->bhqk", q, k) * scale
    p = _softmax(scores, axis=-1)
    return torch.einsum("bhqk,bhkd->bhqd", p, v)
```

```python
import argparse
import struct

HDR = """; Kernarg layout for this problem (48 bytes, ptrs only, base s[0:1]):
"""

KNAME = "standalone__gqa_softmax__decode_kernel"
K2NAME = "gqa_combine_kernel"

WS_BYTES = 268435456
ML_BASE = 1 << 20
STAMP_BASE = 4 << 20


def f32bits(x):
    return struct.unpack("<I", struct.pack("<f", x))[0]


class G:
    def __init__(self):
        self.l = []

    def e(self, s):
        self.l.append("    " + s)

    def lab(self, s):
        self.l.append(s + ":")

    def c(self, s):
        self.l.append("    ; " + s)

    def nop(self, n):
        while n > 0:
            k = min(n, 16)
            self.e(f"s_nop {k-1}")
            n -= k


def q(r):
    return f"v[{r}:{r+3}]"


SQ, SK, SV, SO, SD, SW = 4, 8, 12, 16, 20, 24
S_WAVE, S_GRP, S_SPLIT = 28, 29, 30
S_C, S_SELLO, S_SELHI, S_NEG = 31, 32, 33, 34
S_T0, S_T1, S_T2, S_T3 = 35, 36, 37, 38
S_QOFF = 39
S_OFF = 40
S_ST = 60


def consumer(g, a, poll, vb):
    lane = vb
    vO, vML, vT, vM, vL, vOut = vb + 1, vb + 2, vb + 3, vb + 4, vb + 5, vb + 6
    X = [vb + 8 + 4 * k for k in range(4)]
    ML = [vb + 24 + 2 * k for k in range(4)]
    W = [vb + 32 + k for k in range(4)]
    O = [vb + 36 + k for k in range(4)]
    sc = " sc1" if poll else ""
    g.c("---- consumer ----")
    g.e(f"v_lshlrev_b32 v{vO}, 4, v{lane}")
    g.e(f"v_lshrrev_b32 v{vML}, 3, v{lane}")
    g.e(f"v_lshlrev_b32 v{vML}, 3, v{vML}")
    g.e(f"s_lshl_b32 s{S_T0}, s{S_GRP}, 17")
    g.e(f"s_lshl_b32 s{S_T1}, s{S_SPLIT}, 12")
    g.e(f"s_add_u32 s{S_T0}, s{S_T0}, s{S_T1}")
    g.e(f"s_lshl_b32 s{S_T1}, s{S_GRP}, 3")
    g.e(f"s_lshr_b32 s{S_T2}, s{S_SPLIT}, 2")
    g.e(f"s_add_u32 s{S_T1}, s{S_T1}, s{S_T2}")
    g.e(f"s_lshl_b32 s{S_T1}, s{S_T1}, 8")
    g.e(f"s_add_u32 s{S_T1}, s{S_T1}, {ML_BASE}")
    g.e(f"s_lshl_b32 s{S_T2}, s{S_GRP}, 11")
    g.e(f"s_lshl_b32 s{S_T3}, s{S_SPLIT}, 6")
    g.e(f"s_add_u32 s{S_T2}, s{S_T2}, s{S_T3}")
    g.e(f"v_bfe_u32 v{vT}, v{lane}, 4, 1")
    g.e(f"v_lshlrev_b32 v{vOut}, 5, v{vT}")
    g.e(f"v_bfe_u32 v{vT}, v{lane}, 5, 1")
    g.e(f"v_lshl_add_u32 v{vOut}, v{vT}, 4, v{vOut}")
    g.e(f"v_and_b32 v{vT}, 7, v{lane}")
    g.e(f"v_lshl_add_u32 v{vOut}, v{vT}, 1, v{vOut}")
    if poll:
        g.e(f"s_mov_b32 s{S_T3}, 0")
        g.lab("L_poll")
    for k in range(4):
        g.e(f"buffer_load_dwordx4 {q(X[k])}, v{vO}, s[{SW}:{SW+3}], s{S_T0} offen offset:{1024*k}{sc}")
    for k in range(4):
        g.e(f"buffer_load_dwordx2 v[{ML[k]}:{ML[k]+1}], v{vML}, s[{SW}:{SW+3}], s{S_T1} offen offset:{64*k}{sc}")
    g.e("s_waitcnt vmcnt(0)")
    if poll:
        regs = [X[0] + i for i in range(24)]
        g.e(f"v_max3_u32 v{vT}, v{regs[0]}, v{regs[1]}, v{regs[2]}")
        g.e(f"v_max3_u32 v{vM}, v{regs[3]}, v{regs[4]}, v{regs[5]}")
        rest = regs[6:]
        i = 0
        while i < len(rest):
            t = vT if (i // 2) % 2 == 0 else vM
            g.e(f"v_max3_u32 v{t}, v{t}, v{rest[i]}, v{rest[i+1]}")
            i += 2
        g.e(f"v_max_u32 v{vT}, v{vT}, v{vM}")
        g.e(f"v_cmp_eq_u32 vcc, -1, v{vT}")
        g.nop(2)
        g.e(f"s_add_u32 s{S_T3}, s{S_T3}, 1")
        g.e(f"s_bitcmp1_b32 s{S_T3}, 20")
        g.e("s_cbranch_scc1 L_polled")
        g.e("s_cmp_lg_u64 vcc, 0")
        g.e("s_cbranch_scc1 L_poll")
        g.lab("L_polled")
    g.e(f"v_max3_f32 v{vM}, v{ML[0]}, v{ML[1]}, v{ML[2]}")
    g.e(f"v_max_f32 v{vM}, v{vM}, v{ML[3]}")
    g.nop(2)
    g.e(f"v_max_f32_dpp v{vM}, v{vM}, v{vM} row_ror:8 row_mask:0xf bank_mask:0xf")
    g.e(f"v_mov_b32 v{vT}, v{vM}")
    g.nop(2)
    g.e(f"v_permlane16_swap_b32 v{vT}, v{vM}")
    g.e(f"v_max_f32 v{vM}, v{vM}, v{vT}")
    g.e(f"v_mov_b32 v{vT}, v{vM}")
    g.nop(2)
    g.e(f"v_permlane32_swap_b32 v{vT}, v{vM}")
    g.e(f"v_max_f32 v{vM}, v{vM}, v{vT}")
    for k in range(4):
        g.e(f"v_sub_f32 v{W[k]}, v{ML[k]}, v{vM}")
    for k in range(4):
        g.e(f"v_exp_f32 v{W[k]}, v{W[k]}")
    g.nop(1)
    g.e(f"v_mul_f32 v{vL}, v{W[0]}, v{ML[0]+1}")
    for r in range(4):
        g.e(f"v_mul_f32 v{O[r]}, v{W[0]}, v{X[0]+r}")
    for k in range(1, 4):
        g.e(f"v_fmac_f32 v{vL}, v{W[k]}, v{ML[k]+1}")
        for r in range(4):
            g.e(f"v_fmac_f32 v{O[r]}, v{W[k]}, v{X[k]+r}")
    g.e(f"v_mov_b32 v{vT}, v{vL}")
    g.nop(2)
    g.e(f"v_permlane32_swap_b32 v{O[0]}, v{O[1]}")
    g.e(f"v_permlane32_swap_b32 v{O[2]}, v{O[3]}")
    g.e(f"v_permlane32_swap_b32 v{vT}, v{vL}")
    g.e(f"v_add_f32 v{O[0]}, v{O[0]}, v{O[1]}")
    g.e(f"v_add_f32 v{O[2]}, v{O[2]}, v{O[3]}")
    g.e(f"v_add_f32 v{vL}, v{vL}, v{vT}")
    g.e(f"v_mov_b32 v{vT}, v{vL}")
    g.nop(2)
    g.e(f"v_permlane16_swap_b32 v{O[0]}, v{O[2]}")
    g.e(f"v_permlane16_swap_b32 v{vT}, v{vL}")
    g.e(f"v_add_f32 v{O[0]}, v{O[0]}, v{O[2]}")
    g.e(f"v_add_f32 v{vL}, v{vL}, v{vT}")
    g.nop(2)
    g.e(f"v_add_f32_dpp v{O[0]}, v{O[0]}, v{O[0]} row_ror:8 row_mask:0xf bank_mask:0xf")
    g.e(f"v_add_f32_dpp v{vL}, v{vL}, v{vL} row_ror:8 row_mask:0xf bank_mask:0xf")
    g.e(f"v_rcp_f32 v{vL}, v{vL}")
    g.nop(1)
    g.e(f"v_mul_f32 v{O[0]}, v{O[0]}, v{vL}")
    g.e(f"v_cvt_pk_bf16_f32 v{O[0]}, v{O[0]}, v{O[0]}")
    g.e(f"buffer_store_short v{O[0]}, v{vOut}, s[{SO}:{SO+3}], s{S_T2} offen")


def stamp(g, a, idx):
    if a.stamps:
        g.e(f"s_memrealtime s[{S_ST+2*idx}:{S_ST+2*idx+1}]")


def flush_stamps(g, a, n, vt):
    if not a.stamps:
        return
    g.e("s_waitcnt lgkmcnt(0)")
    g.e(f"s_lshl_b32 s{S_T0}, s2, 4")
    g.e(f"s_add_u32 s{S_T0}, s{S_T0}, s{S_WAVE}")
    g.e(f"s_lshl_b32 s{S_T0}, s{S_T0}, 6")
    g.e(f"s_add_u32 s{S_T0}, s{S_T0}, {STAMP_BASE}")
    g.e("s_mov_b64 exec, 1")
    for i in range(n):
        g.e(f"v_mov_b32 v{vt}, s{S_ST+2*i}")
        g.e(f"buffer_store_dword v{vt}, off, s[{SW}:{SW+3}], s{S_T0} offset:{4*i}")
        g.e("s_waitcnt vmcnt(0)")
    g.e(f"s_getreg_b32 s{S_T1}, hwreg(HW_REG_XCC_ID)")
    g.e(f"v_mov_b32 v{vt}, s{S_T1}")
    g.e(f"buffer_store_dword v{vt}, off, s[{SW}:{SW+3}], s{S_T0} offset:60")
    g.e("s_waitcnt vmcnt(0)")
    g.e("s_mov_b64 exec, -1")


def main_kernel(g, a):
    NW = a.nw
    KW = 1024 // NW
    NT = KW // 16
    NB = KW // 32
    NREG = 512 // (NW // 4)
    NREG = min(NREG, 256)
    spin = a.comb == "spin"
    kfl = (" " + a.kflags) if a.kflags else ""
    vfl = (" " + a.vflags) if a.vflags else ""
    LDS_MAX = 0
    LDS_L = 512
    LDS_O = 1024

    vTID, vK, vV, vQ, vA, vB, vM, vL = range(8)
    QR = 8
    SR = 24
    pool0 = SR + 4 * NT
    quads = list(range(pool0, NREG - 3, 4))
    assert len(quads) >= 4 * NT

    g.lab(KNAME)
    g.e("s_cmp_ge_u32 s2, 256")
    g.e("s_cbranch_scc1 L_end")
    g.e(f"s_load_dwordx2 s[{SK}:{SK+1}], s[0:1], 8")
    g.e(f"s_load_dwordx2 s[{SQ}:{SQ+1}], s[0:1], 0")
    g.e(f"s_load_dwordx2 s[{SV}:{SV+1}], s[0:1], 16")
    g.e(f"s_load_dwordx2 s[{SW}:{SW+1}], s[0:1], 40")
    g.e(f"s_load_dwordx2 s[{SO}:{SO+1}], s[0:1], 24")
    g.e(f"s_load_dwordx2 s[{SD}:{SD+1}], s[0:1], 32")
    stamp(g, a, 0)
    g.e(f"v_lshrrev_b32 v{vA}, 6, v0")
    g.e(f"v_and_b32 v{vV}, 63, v0")
    g.e(f"v_readfirstlane_b32 s{S_WAVE}, v{vA}")
    if a.grpmode == "mod":
        g.e(f"s_and_b32 s{S_GRP}, s2, 7")
        g.e(f"s_lshr_b32 s{S_SPLIT}, s2, 3")
    else:
        g.e(f"s_lshr_b32 s{S_GRP}, s2, 5")
        g.e(f"s_and_b32 s{S_SPLIT}, s2, 31")
    g.e(f"v_and_b32 v{vA}, 3, v0")
    g.e(f"v_lshlrev_b32 v{vK}, 10, v{vA}")
    g.e(f"v_bfe_u32 v{vA}, v0, 2, 2")
    g.e(f"v_lshl_add_u32 v{vK}, v{vA}, 8, v{vK}")
    g.e(f"v_bfe_u32 v{vB}, v0, 4, 2")
    g.e(f"v_lshl_add_u32 v{vK}, v{vB}, 4, v{vK}")
    g.e(f"v_and_b32 v{vA}, 7, v0")
    g.e(f"v_lshlrev_b32 v{vQ}, 8, v{vA}")
    g.e(f"v_lshl_add_u32 v{vQ}, v{vB}, 4, v{vQ}")
    g.e(f"v_lshlrev_b32 v{vV}, 4, v{vV}")
    g.e(f"s_lshl_b32 s{S_OFF}, s{S_GRP}, 23")
    g.e(f"s_lshl_b32 s{S_T0}, s{S_SPLIT}, 18")
    g.e(f"s_add_u32 s{S_OFF}, s{S_OFF}, s{S_T0}")
    g.e(f"s_mul_i32 s{S_T0}, s{S_WAVE}, {KW*256}")
    g.e(f"s_add_u32 s{S_OFF}, s{S_OFF}, s{S_T0}")
    g.e(f"s_lshl_b32 s{S_QOFF}, s{S_GRP}, 11")
    for r, n in ((SK, 0x4000000), (SQ, 16384), (SV, 0x4000000)):
        g.e(f"s_mov_b32 s{r+2}, {n:#x}")
        g.e(f"s_mov_b32 s{r+3}, 0x20000")
    for t in range(1, NT):
        g.e(f"s_add_u32 s{S_OFF+t}, s{S_OFF}, {4096*t}")
    for r, n in ((SW, WS_BYTES), (SO, 16384), (SD, 256)):
        g.e(f"s_mov_b32 s{r+2}, {n:#x}")
        g.e(f"s_mov_b32 s{r+3}, 0x20000")
    g.e("s_waitcnt lgkmcnt(0)")
    stamp(g, a, 1)

    if spin:
        g.e(f"s_cmp_lg_u32 s{S_WAVE}, {NW-1}")
        g.e("s_cbranch_scc1 L_noclear")
        for i in range(4):
            g.e(f"v_mov_b32 v{QR+i}, -1")
        g.e(f"v_bfe_u32 v{vA}, v0, 3, 3")
        g.e(f"v_lshlrev_b32 v{vA}, 12, v{vA}")
        g.e(f"v_and_b32 v{vB}, 7, v0")
        g.e(f"v_lshl_add_u32 v{vA}, v{vB}, 4, v{vA}")
        g.e(f"s_lshl_b32 s{S_T0}, s{S_GRP}, 17")
        g.e(f"s_lshl_b32 s{S_T1}, s{S_SPLIT}, 7")
        g.e(f"s_add_u32 s{S_T0}, s{S_T0}, s{S_T1}")
        for k in range(4):
            g.e(f"buffer_store_dwordx4 {q(QR)}, v{vA}, s[{SW}:{SW+3}], s{S_T0} offen sc1")
            g.e(f"s_add_u32 s{S_T0}, s{S_T0}, 0x8000")
        g.e(f"v_lshlrev_b32 v{vB}, 8, v{vB}")
        g.e(f"s_lshl_b32 s{S_T0}, s{S_GRP}, 11")
        g.e(f"s_lshl_b32 s{S_T1}, s{S_SPLIT}, 3")
        g.e(f"s_add_u32 s{S_T0}, s{S_T0}, s{S_T1}")
        g.e(f"s_add_u32 s{S_T0}, s{S_T0}, {ML_BASE}")
        g.e("s_mov_b64 exec, 0xff")
        g.e(f"buffer_store_dwordx2 v[{QR}:{QR+1}], v{vB}, s[{SW}:{SW+3}], s{S_T0} offen sc1")
        g.e("s_mov_b64 exec, 1")
        g.e(f"v_mov_b32 v{vA}, 1")
        g.e(f"s_lshl_b32 s{S_T0}, s{S_GRP}, 2")
        g.e("s_waitcnt vmcnt(0)")
        g.e(f"buffer_atomic_add v{vA}, off, s[{SD}:{SD+3}], s{S_T0} sc1")
        g.e("s_mov_b64 exec, -1")
        g.e("s_waitcnt vmcnt(0)")
        g.lab("L_noclear")

    issued = []

    def issue(name, text):
        issued.append(name)
        g.e(text)

    def wait_for(names):
        last = max(issued.index(n) for n in names)
        n_after = len(issued) - 1 - last
        assert n_after <= 63
        g.e(f"s_waitcnt vmcnt({n_after})")

    for j in range(4):
        issue(("q", j), f"buffer_load_dwordx4 {q(QR+4*j)}, v{vQ}, s[{SQ}:{SQ+3}], s{S_QOFF} offen offset:{64*j}")
    free = list(quads)
    kreg = {}
    for t in range(NT):
        for j in range(4):
            r = free.pop(0)
            kreg[(t, j)] = r
            if a.klinear:
                issue(("k", t, j), f"buffer_load_dwordx4 {q(r)}, v{vV}, s[{SK}:{SK+3}], s{S_OFF+t} offen offset:{1024*j}{kfl}")
            else:
                issue(("k", t, j), f"buffer_load_dwordx4 {q(r)}, v{vK}, s[{SK}:{SK+3}], s{S_OFF+t} offen offset:{64*j}{kfl}")
    vreg = {}
    nv = [0]
    NV = 8 * NB

    def issue_v(maxn=None):
        cnt = 0
        while nv[0] < NV and free and (maxn is None or cnt < maxn):
            n = nv[0]
            r = free.pop(0)
            vreg[n] = r
            issue(("v", n), f"buffer_load_dwordx4 {q(r)}, v{vV}, s[{SV}:{SV+3}], s{S_OFF+n//4} offen offset:{1024*(n%4)}{vfl}")
            nv[0] += 1
            cnt += 1

    issue_v(a.vup if a.vup >= 0 else None)
    stamp(g, a, 2)
    cval = 1.4426950408889634 * (128 ** -0.5)
    g.e(f"s_mov_b32 s{S_C}, {f32bits(cval):#x}")
    g.e(f"s_mov_b32 s{S_SELLO}, 0x05040100")
    g.e(f"s_mov_b32 s{S_SELHI}, 0x07060302")
    g.e(f"s_mov_b32 s{S_NEG}, {f32bits(-3.0e38):#x}")

    for t in range(NT):
        wait_for([("k", t, 3)] + [("q", 3)])
        if t == 0:
            stamp(g, a, 3)
        for j in range(4):
            cin = "0" if j == 0 else q(SR + 4 * t)
            g.e(f"v_mfma_f32_16x16x32_bf16 {q(SR+4*t)}, {q(kreg[(t,j)])}, {q(QR+4*j)}, {cin}")
        for j in range(4):
            free.append(kreg[(t, j)])
        issue_v()
    assert nv[0] == NV, (nv[0], NV)
    for j in range(4):
        free.append(QR + 4 * j)
    assert len(free) >= 10, len(free)
    acc = [free.pop(0) for _ in range(8)]
    T = [free.pop(0), free.pop(0)]
    if spin:
        g.e(f"s_lshl_b32 s{S_T3}, s{S_GRP}, 2")
        issue(("cnt",), f"buffer_load_dword v{vQ}, off, s[{SD}:{SD+3}], s{S_T3} sc1")
    stamp(g, a, 4)
    g.e(f"v_and_b32 v{vA}, 7, v0")
    g.e(f"v_mul_u32_u24 v{vA}, {NW*4}, v{vA}")
    g.e(f"s_lshl_b32 s{S_T0}, s{S_WAVE}, 2")
    g.e(f"v_add_u32 v{vB}, s{S_T0}, v{vA}")
    g.nop(6)
    S = [SR + i for i in range(4 * NT)]
    g.e(f"v_max3_f32 v{vM}, v{S[0]}, v{S[1]}, s{S_NEG}")
    for i in range(2, 4 * NT, 2):
        g.e(f"v_max3_f32 v{vM}, v{vM}, v{S[i]}, v{S[i+1]}")
    g.e(f"v_mov_b32 v{vL}, v{vM}")
    g.nop(2)
    g.e(f"v_permlane32_swap_b32 v{vL}, v{vM}")
    g.e(f"v_max_f32 v{vM}, v{vM}, v{vL}")
    g.e(f"v_mov_b32 v{vL}, v{vM}")
    g.nop(2)
    g.e(f"v_permlane16_swap_b32 v{vL}, v{vM}")
    g.e(f"v_max_f32 v{vM}, v{vM}, v{vL}")
    g.e("s_mov_b64 exec, 0xff")
    g.e(f"ds_write_b32 v{vB}, v{vM} offset:{LDS_MAX}")
    g.e("s_mov_b64 exec, -1")
    g.e("s_waitcnt lgkmcnt(0)")
    g.e("s_barrier")
    stamp(g, a, 5)
    for i in range(NW // 4):
        g.e(f"ds_read_b128 {q(acc[i])}, v{vA} offset:{LDS_MAX+16*i}")
    g.e("s_waitcnt lgkmcnt(0)")
    vals = [acc[i] + k for i in range(NW // 4) for k in range(4)]
    g.e(f"v_max3_f32 v{vM}, v{vals[0]}, v{vals[1]}, v{vals[2]}")
    i = 3
    while i + 1 < len(vals):
        g.e(f"v_max3_f32 v{vM}, v{vM}, v{vals[i]}, v{vals[i+1]}")
        i += 2
    g.e(f"v_max_f32 v{vM}, v{vM}, v{vals[i]}")
    g.e(f"v_mul_f32 v{vM}, s{S_C}, v{vM}")
    for s in S:
        g.e(f"v_fma_f32 v{s}, v{s}, s{S_C}, -v{vM}")
    for s in S:
        g.e(f"v_exp_f32 v{s}, v{s}")
    g.nop(1)
    g.e(f"v_add_f32 v{vL}, v{S[0]}, v{S[1]}")
    g.e(f"v_add_f32 v{T[0]}, v{S[2]}, v{S[3]}")
    for i in range(4, 4 * NT, 2):
        g.e(f"v_add_f32 v{vL}, v{vL}, v{S[i]}")
        g.e(f"v_add_f32 v{T[0]}, v{T[0]}, v{S[i+1]}")
    g.e(f"v_add_f32 v{vL}, v{vL}, v{T[0]}")
    P = []
    for u in range(NB):
        b = SR + 8 * u
        for r in range(4):
            g.e(f"v_cvt_pk_bf16_f32 v{b+r}, v{b+2*r}, v{b+2*r+1}")
        P.append(b)
    g.e(f"v_mov_b32 v{T[0]}, v{vL}")
    g.nop(2)
    g.e(f"v_permlane32_swap_b32 v{T[0]}, v{vL}")
    g.e(f"v_add_f32 v{vL}, v{vL}, v{T[0]}")
    g.e(f"v_mov_b32 v{T[0]}, v{vL}")
    g.nop(2)
    g.e(f"v_permlane16_swap_b32 v{T[0]}, v{vL}")
    g.e(f"v_add_f32 v{vL}, v{vL}, v{T[0]}")
    g.e("s_mov_b64 exec, 0xff")
    g.e(f"ds_write_b32 v{vB}, v{vL} offset:{LDS_L}")
    g.e("s_mov_b64 exec, -1")
    g.e(f"v_and_b32 v{vK}, 15, v0")
    g.e(f"v_mul_u32_u24 v{vK}, 528, v{vK}")
    g.e(f"v_bfe_u32 v{vB}, v0, 4, 2")
    g.e(f"v_lshl_add_u32 v{vK}, v{vB}, 7, v{vK}")
    g.e(f"s_lshl_b32 s{S_T0}, s{S_WAVE}, 12")
    g.e(f"v_add_u32 v{vK}, s{S_T0}, v{vK}")
    stamp(g, a, 6)

    for u in range(NB):
        wait_for([("v", 8 * u + 7)])
        if u == NB - 1:
            stamp(g, a, 7)
        L = [vreg[8 * u + i] for i in range(8)]
        for dw in range(4):
            for r in range(4):
                g.e(f"v_perm_b32 v{T[0]+r}, v{L[2*r+1]+dw}, v{L[2*r]+dw}, s{S_SELLO}")
            for r in range(4):
                g.e(f"v_perm_b32 v{T[1]+r}, v{L[2*r+1]+dw}, v{L[2*r]+dw}, s{S_SELHI}")
            for h in range(2):
                e = 2 * dw + h
                cin = "0" if u == 0 else q(acc[e])
                if h == 1:
                    g.nop(1)
                g.e(f"v_mfma_f32_16x16x32_bf16 {q(acc[e])}, {q(T[h])}, {q(P[u])}, {cin}")
    ad = [SR + 4 + i for i in range(4)] + [SR + 12 + i for i in range(4)]
    for e in range(8):
        g.e(f"v_xor_b32 v{ad[e]}, {16*e}, v{vK}")
    g.e("s_mov_b32 exec_lo, 0x00ff00ff")
    g.e("s_mov_b32 exec_hi, 0x00ff00ff")
    for e in range(8):
        if e == 7:
            g.nop(2)
        g.e(f"ds_write_b128 v{ad[e]}, {q(acc[e])} offset:{LDS_O}")
    g.e("s_mov_b64 exec, -1")
    g.e("s_waitcnt lgkmcnt(0)")
    g.e("s_barrier")
    stamp(g, a, 8)
    wsc = " sc1" if spin else ""
    LW = 4 if NW > 4 else 0
    CW = 5 if NW > 4 else 1
    g.e(f"s_cmp_ge_u32 s{S_WAVE}, 4")
    g.e("s_cbranch_scc1 L_notred")
    R = pool0
    g.e(f"v_lshrrev_b32 v{vA}, 5, v0")
    g.e(f"v_xor_b32 v{vB}, v{vA}, v0")
    g.e(f"v_and_b32 v{vB}, 7, v{vB}")
    g.e(f"v_lshrrev_b32 v{vK}, 3, v0")
    g.e(f"v_lshlrev_b32 v{vL}, 7, v{vK}")
    g.e(f"v_lshl_add_u32 v{vB}, v{vB}, 4, v{vL}")
    for w in range(NW):
        g.e(f"ds_read_b128 {q(R+4*w)}, v{vB} offset:{LDS_O+4096*w}")
    g.e(f"v_and_b32 v{vA}, 7, v0")
    g.e(f"v_lshlrev_b32 v{vA}, 4, v{vA}")
    g.e(f"v_lshl_add_u32 v{vA}, v{vK}, 12, v{vA}")
    g.e(f"s_lshl_b32 s{S_T0}, s{S_GRP}, 17")
    g.e(f"s_lshl_b32 s{S_T1}, s{S_SPLIT}, 7")
    g.e(f"s_add_u32 s{S_T0}, s{S_T0}, s{S_T1}")
    for w in range(1, NW):
        g.e(f"s_waitcnt lgkmcnt({min(NW-1-w, 15)})")
        g.e(f"v_pk_add_f32 v[{R}:{R+1}], v[{R}:{R+1}], v[{R+4*w}:{R+4*w+1}]")
        g.e(f"v_pk_add_f32 v[{R+2}:{R+3}], v[{R+2}:{R+3}], v[{R+4*w+2}:{R+4*w+3}]")
    if spin:
        for i in range(4):
            g.e(f"v_min_u32 v{R+i}, -2, v{R+i}")
    g.e(f"buffer_store_dwordx4 {q(R)}, v{vA}, s[{SW}:{SW+3}], s{S_T0} offen{wsc}")
    if NW > 4:
        stamp(g, a, 9)
        flush_stamps(g, a, 10, vB)
        g.e("s_endpgm")
    g.lab("L_notred")
    g.e(f"s_cmp_lg_u32 s{S_WAVE}, {LW}")
    g.e("s_cbranch_scc1 L_notl")
    g.e(f"v_and_b32 v{vB}, 7, v0")
    g.e(f"v_mul_u32_u24 v{vA}, {NW*4}, v{vB}")
    for i in range(NW // 4):
        g.e(f"ds_read_b128 {q(R+4*i)}, v{vA} offset:{LDS_L+16*i}")
    g.e(f"v_lshlrev_b32 v{vB}, 8, v{vB}")
    g.e(f"s_lshl_b32 s{S_T0}, s{S_GRP}, 11")
    g.e(f"s_lshl_b32 s{S_T1}, s{S_SPLIT}, 3")
    g.e(f"s_add_u32 s{S_T0}, s{S_T0}, s{S_T1}")
    g.e(f"s_add_u32 s{S_T0}, s{S_T0}, {ML_BASE}")
    g.e("s_waitcnt lgkmcnt(0)")
    assert vL == vM + 1 and vM % 2 == 0
    g.e(f"v_add_f32 v{vL}, v{R}, v{R+1}")
    for i in range(2, NW):
        g.e(f"v_add_f32 v{vL}, v{vL}, v{R+i}")
    if spin:
        g.e(f"v_min_u32 v{vL}, -2, v{vL}")
        g.e(f"v_min_u32 v{vM}, -2, v{vM}")
    g.e("s_mov_b64 exec, 0xff")
    g.e(f"buffer_store_dwordx2 v[{vM}:{vL}], v{vB}, s[{SW}:{SW+3}], s{S_T0} offen{wsc}")
    g.e("s_mov_b64 exec, -1")
    g.lab("L_notl")
    if spin:
        g.e(f"s_cmp_lg_u32 s{S_WAVE}, {CW}")
        g.e("s_cbranch_scc1 L_fin")
        g.e(f"s_mov_b32 s{S_T1}, 0")
        g.lab("L_cnt")
        g.e("s_waitcnt vmcnt(0)")
        g.e(f"v_readfirstlane_b32 s{S_T0}, v{vQ}")
        g.nop(2)
        g.e(f"s_cmp_eq_u32 s{S_T0}, 32")
        g.e("s_cbranch_scc1 L_cntok")
        g.e(f"s_add_u32 s{S_T1}, s{S_T1}, 1")
        g.e(f"s_bitcmp1_b32 s{S_T1}, 20")
        g.e("s_cbranch_scc1 L_cntok")
        g.e("s_sleep 2")
        g.e(f"buffer_load_dword v{vQ}, off, s[{SD}:{SD+3}], s{S_T3} sc1")
        g.e("s_branch L_cnt")
        g.lab("L_cntok")
        g.e(f"v_and_b32 v{R}, 63, v0")
        consumer(g, a, True, R)
        g.lab("L_fin")
    stamp(g, a, 9)
    flush_stamps(g, a, 10, vB)
    g.lab("L_end")
    g.e("s_endpgm")
    return NREG, LDS_O + 4096 * NW


def combine_kernel(g, a):
    g.l.append(".p2align 8")
    g.l.append(f".type {K2NAME},@function")
    g.lab(K2NAME)
    g.e("s_cmp_ge_u32 s2, 256")
    g.e("s_cbranch_scc1 L2_end")
    g.e(f"s_load_dwordx2 s[{SW}:{SW+1}], s[0:1], 40")
    g.e(f"s_load_dwordx2 s[{SO}:{SO+1}], s[0:1], 24")
    g.e(f"s_lshr_b32 s{S_GRP}, s2, 5")
    g.e(f"s_and_b32 s{S_SPLIT}, s2, 31")
    for r, n in ((SW, WS_BYTES), (SO, 16384)):
        g.e(f"s_mov_b32 s{r+2}, {n:#x}")
        g.e(f"s_mov_b32 s{r+3}, 0x20000")
    g.e("s_waitcnt lgkmcnt(0)")
    consumer(g, a, False, 0)
    g.lab("L2_end")
    g.e("s_endpgm")


def kd(name, vg, sg):
    acc = (vg + 3) // 4 * 4
    return f""".p2align 6
.amdhsa_kernel {name}
  .amdhsa_next_free_vgpr {vg}
  .amdhsa_next_free_sgpr {sg}
  .amdhsa_accum_offset {acc}
  .amdhsa_group_segment_fixed_size 0
  .amdhsa_kernarg_size 48
  .amdhsa_user_sgpr_count 2
  .amdhsa_user_sgpr_kernarg_segment_ptr 1
  .amdhsa_system_sgpr_workgroup_id_x 1
  .amdhsa_float_denorm_mode_32 3
.end_amdhsa_kernel
"""


def build(a):
    g = G()
    nreg, lds = main_kernel(g, a)
    if a.comb == "2k":
        combine_kernel(g, a)
    out = HDR
    if a.comb == "2k":
        out += f"; @launch kernel={KNAME} grid=(256,1,1) block=({a.nw*64},1,1) lds={lds}\n"
        out += f"; @launch kernel={K2NAME} grid=(256,1,1) block=(64,1,1) lds=0\n"
    else:
        out += f"; @launch grid=(256,1,1) block=({a.nw*64},1,1) lds={lds}\n"
    out += '.amdgcn_target "amdgcn-amd-amdhsa--gfx950"\n.text\n'
    out += f".globl {KNAME}\n.p2align 8\n.type {KNAME},@function\n"
    out += "\n".join(g.l) + "\n"
    out += '.section .rodata,"a"\n'
    out += kd(KNAME, nreg, 96)
    if a.comb == "2k":
        out += kd(K2NAME, 40, 48)
    return out


if __name__ == "__main__":
    p = argparse.ArgumentParser()
    p.add_argument("--nw", type=int, default=16)
    p.add_argument("--comb", default="2k")
    p.add_argument("--kflags", default="")
    p.add_argument("--vflags", default="")
    p.add_argument("--grpmode", default="mod")
    p.add_argument("--klinear", action="store_true")
    p.add_argument("--stamps", action="store_true")
    p.add_argument("--vup", type=int, default=-1)
    p.add_argument("-o", default="/dev/stdout")
    a = p.parse_args()
    open(a.o, "w").write(build(a))
```

```python
import argparse
import struct

HDR = """; Kernarg layout for this problem (48 bytes, ptrs only, base s[0:1]):
;
;  * every workgroup publishes its partial in d_ws as 16-byte granules {2 x O, max|sum, tag} and
"""

KNAME = "standalone__gqa_softmax__decode_kernel"
WS_BYTES = 268435456
EPOCH_BASE = 2 << 20
STAMP_BASE = 4 << 20
NW = 8
NB = 4
NT = 8


def f32bits(x):
    return struct.unpack("<I", struct.pack("<f", x))[0]


class G:
    def __init__(self):
        self.l = []

    def e(self, s):
        self.l.append("    " + s)

    def lab(self, s):
        self.l.append(s + ":")

    def c(self, s):
        self.l.append("    ; " + s)

    def nop(self, n):
        while n > 0:
            k = min(n, 16)
            self.e(f"s_nop {k-1}")
            n -= k


def q(r):
    return f"v[{r}:{r+3}]"


SQ, SK, SV, SO, SW = 4, 8, 12, 16, 20
S_WAVE, S_GRP, S_SPLIT = 24, 25, 26
S_C, S_SELLO, S_SELHI, S_NEG = 27, 28, 29, 30
S_T0, S_T1, S_T2, S_T3 = 31, 32, 33, 34
S_QOFF, S_EPO, S_POLL, S_XCC = 35, 36, 37, 38
S_OFF = 40
S_F0, S_F1 = 48, 49
S_ST = 60

vK, vV, vQ, vA, vB, vM, vL = range(1, 8)
QR = 8
SR = 24
POOL = 56
vNON = 255
LDS_ML = 0
LDS_O = 1024


def stamp(g, a, idx):
    if a.stamps:
        g.e(f"s_memrealtime s[{S_ST+2*idx}:{S_ST+2*idx+1}]")


def flush_stamps(g, a, n, vt):
    g.e("s_waitcnt lgkmcnt(0)")
    g.e(f"s_lshl_b32 s{S_T0}, s2, 4")
    g.e(f"s_add_u32 s{S_T0}, s{S_T0}, s{S_WAVE}")
    g.e(f"s_lshl_b32 s{S_T0}, s{S_T0}, 6")
    g.e(f"s_add_u32 s{S_T0}, s{S_T0}, {STAMP_BASE}")
    g.e("s_mov_b64 exec, 1")
    for i in range(n):
        g.e(f"v_mov_b32 v{vt+i}, s{S_ST+2*i}")
    g.e(f"v_mov_b32 v{vt+15}, s{S_XCC}")
    for i in range(4):
        g.e(f"buffer_store_dwordx4 {q(vt+4*i)}, off, s[{SW}:{SW+3}], s{S_T0} offset:{16*i}")
    g.e("s_mov_b64 exec, -1")


def far_restore(g, lane):
    g.c("publish this workgroup's partial device-wide (copy kept in LDS by the reducer waves)")
    t0, t1, D = 56, 57, 60
    g.e("s_barrier")
    g.e(f"v_lshlrev_b32 v{t0}, 4, v{lane}")
    g.e(f"v_lshrrev_b32 v{t1}, 3, v{lane}")
    g.e(f"v_lshlrev_b32 v{t1}, 13, v{t1}")
    g.e(f"v_and_b32 v{D}, 7, v{lane}")
    g.e(f"v_lshl_add_u32 v{t1}, v{D}, 4, v{t1}")
    g.e(f"s_lshl_b32 s{S_F0}, s{S_GRP}, 18")
    g.e(f"s_lshl_b32 s{S_F1}, s{S_SPLIT}, 7")
    g.e(f"s_add_u32 s{S_F0}, s{S_F0}, s{S_F1}")
    for j in range(4):
        for h in range(2):
            g.e(f"ds_read_b128 {q(D+8*j+4*h)}, v{t0} offset:{LDS_O+4096*h+1024*j}")
    g.e("s_waitcnt lgkmcnt(0)")
    for j in range(4):
        g.e(f"s_add_u32 s{S_F1}, s{S_F0}, 4096")
        g.e(f"buffer_store_dwordx4 {q(D+8*j)}, v{t1}, s[{SW}:{SW+3}], s{S_F0} offen sc1")
        g.e(f"buffer_store_dwordx4 {q(D+8*j+4)}, v{t1}, s[{SW}:{SW+3}], s{S_F1} offen sc1")
        g.e(f"s_add_u32 s{S_F0}, s{S_F0}, 0x10000")


def consumer(g, a):
    lane, vT, vMx, vLs, vOut = 8, 10, 11, 12, 13
    XA = [16 + 8 * k for k in range(4)]
    XB = [20 + 8 * k for k in range(4)]
    W = [48 + k for k in range(4)]
    O = [52 + k for k in range(4)]
    g.c("---- finish slice p of the group's output from the 32 partials ----")
    g.e(f"s_add_u32 s{S_T1}, s{S_POLL}, 4096")
    g.e(f"s_mov_b32 s{S_T3}, 0")

    def poll_round(first):
        for k in range(4):
            g.e(f"buffer_load_dwordx4 {q(XA[k])}, v{vV}, s[{SW}:{SW+3}], s{S_POLL} offen offset:{1024*k} sc1")
            g.e(f"buffer_load_dwordx4 {q(XB[k])}, v{vV}, s[{SW}:{SW+3}], s{S_T1} offen offset:{1024*k} sc1")
        g.e(f"s_add_u32 s{S_T3}, s{S_T3}, 1")
        if first:
            g.e(f"v_and_b32 v{lane}, 63, v0")
            g.e(f"s_lshl_b32 s{S_T2}, s{S_SPLIT}, 6")
            g.e(f"s_add_u32 s{S_T2}, s{S_T2}, s{S_QOFF}")
            g.e(f"v_bfe_u32 v{vT}, v0, 4, 1")
            g.e(f"v_lshlrev_b32 v{vOut}, 5, v{vT}")
            g.e(f"v_bfe_u32 v{vT}, v0, 5, 1")
            g.e(f"v_lshl_add_u32 v{vOut}, v{vT}, 4, v{vOut}")
            g.e(f"v_and_b32 v{vT}, 7, v0")
            g.e(f"v_lshl_add_u32 v{vOut}, v{vT}, 1, v{vOut}")
        for k in range(4):
            g.e(f"s_waitcnt vmcnt({6-2*k})")
            g.e(f"v_cmpx_eq_u32 vcc, v{vNON}, v{XA[k]+3}")
            g.e(f"v_cmpx_eq_u32 vcc, v{vNON}, v{XB[k]+3}")
        g.nop(4)
        g.e("s_mov_b64 vcc, exec")
        g.e("s_mov_b64 exec, -1")
        g.e("s_cmp_eq_u64 vcc, -1")
        g.e("s_cbranch_scc1 L_polled")

    g.lab("L_poll")
    if a.stamps:
        g.e(f"s_mov_b32 s{S_ST+6}, s{S_ST+22}")
        stamp(g, a, 11)
    poll_round(True)
    g.e(f"s_cmp_lt_u32 s{S_T3}, {a.near}")
    g.e("s_cbranch_scc1 L_poll")
    g.c("taking long: some producer may sit on another XCD")
    far_restore(g, lane)
    g.e("s_waitcnt vmcnt(0)")
    g.lab("L_pollfar")
    poll_round(False)
    g.e(f"s_bitcmp0_b32 s{S_T3}, 20")
    g.e("s_cbranch_scc1 L_pollfar")
    g.lab("L_polled")
    stamp(g, a, 10)
    if a.stamps:
        g.e(f"s_mov_b32 s{S_ST+26}, s{S_T3}")
    g.e(f"v_max3_f32 v{vMx}, v{XA[0]+2}, v{XA[1]+2}, v{XA[2]+2}")
    g.e(f"v_max_f32 v{vMx}, v{vMx}, v{XA[3]+2}")
    g.nop(2)
    g.e(f"v_max_f32_dpp v{vMx}, v{vMx}, v{vMx} row_ror:8 row_mask:0xf bank_mask:0xf")
    g.e(f"v_mov_b32 v{vT}, v{vMx}")
    g.nop(2)
    g.e(f"v_permlane16_swap_b32 v{vT}, v{vMx}")
    g.e(f"v_max_f32 v{vMx}, v{vMx}, v{vT}")
    g.e(f"v_mov_b32 v{vT}, v{vMx}")
    g.nop(2)
    g.e(f"v_permlane32_swap_b32 v{vT}, v{vMx}")
    g.e(f"v_max_f32 v{vMx}, v{vMx}, v{vT}")
    for k in range(4):
        g.e(f"v_sub_f32 v{W[k]}, v{XA[k]+2}, v{vMx}")
    for k in range(4):
        g.e(f"v_exp_f32 v{W[k]}, v{W[k]}")
    src = lambda k, r: (XA[k] + r) if r < 2 else (XB[k] + r - 2)
    g.e(f"v_mul_f32 v{vLs}, v{W[0]}, v{XB[0]+2}")
    for r in range(4):
        g.e(f"v_mul_f32 v{O[r]}, v{W[0]}, v{src(0, r)}")
    for k in range(1, 4):
        g.e(f"v_fmac_f32 v{vLs}, v{W[k]}, v{XB[k]+2}")
        for r in range(4):
            g.e(f"v_fmac_f32 v{O[r]}, v{W[k]}, v{src(k, r)}")
    g.e(f"v_mov_b32 v{vT}, v{vLs}")
    g.nop(1)
    g.e(f"v_permlane32_swap_b32 v{O[0]}, v{O[1]}")
    g.e(f"v_permlane32_swap_b32 v{O[2]}, v{O[3]}")
    g.e(f"v_permlane32_swap_b32 v{vT}, v{vLs}")
    g.e(f"v_add_f32 v{O[0]}, v{O[0]}, v{O[1]}")
    g.e(f"v_add_f32 v{O[2]}, v{O[2]}, v{O[3]}")
    g.e(f"v_add_f32 v{vLs}, v{vLs}, v{vT}")
    g.e(f"v_mov_b32 v{vT}, v{vLs}")
    g.nop(2)
    g.e(f"v_permlane16_swap_b32 v{O[0]}, v{O[2]}")
    g.e(f"v_permlane16_swap_b32 v{vT}, v{vLs}")
    g.e(f"v_add_f32 v{O[0]}, v{O[0]}, v{O[2]}")
    g.e(f"v_add_f32 v{vLs}, v{vLs}, v{vT}")
    g.nop(2)
    g.e(f"v_add_f32_dpp v{vLs}, v{vLs}, v{vLs} row_ror:8 row_mask:0xf bank_mask:0xf")
    g.e(f"v_add_f32_dpp v{O[0]}, v{O[0]}, v{O[0]} row_ror:8 row_mask:0xf bank_mask:0xf")
    g.e(f"v_rcp_f32 v{vLs}, v{vLs}")
    g.nop(1)
    g.e(f"v_mul_f32 v{O[0]}, v{O[0]}, v{vLs}")
    g.e(f"v_cvt_pk_bf16_f32 v{O[0]}, v{O[0]}, v{O[0]}")
    if a.dry:
        g.e(f"s_cmp_lg_u32 s{S_WAVE}, 4")
        g.e("s_cbranch_scc1 L_done")
    g.e(f"buffer_store_short v{O[0]}, v{vOut}, s[{SO}:{SO+3}], s{S_T2} offen")
    g.c("all producers on this XCD?  otherwise (unless done already) republish device-wide")
    g.e(f"s_cmp_gt_u32 s{S_T3}, {a.near}")
    g.e("s_cbranch_scc1 L_nearok")
    for k in range(4):
        g.e(f"v_and_b32 v{W[k]}, 15, v{XB[k]+2}")
    for k in range(4):
        g.e(f"v_cmpx_eq_u32 vcc, s{S_XCC}, v{W[k]}")
    g.nop(4)
    g.e("s_mov_b64 vcc, exec")
    g.e("s_mov_b64 exec, -1")
    g.e("s_cmp_eq_u64 vcc, -1")
    g.e("s_cbranch_scc1 L_nearok")
    far_restore(g, lane)
    g.lab("L_nearok")
    g.c("slice 0 advances the group's epoch word (every wave of the group read it before publishing)")
    g.e(f"s_cmp_lg_u32 s{S_SPLIT}, 0")
    g.e("s_cbranch_scc1 L_done")
    g.e("s_mov_b64 exec, 1")
    g.e(f"buffer_store_dword v{vNON}, off, s[{SW}:{SW+3}], s{S_EPO} sc1")
    g.e("s_mov_b64 exec, -1")


def kernel(g, a):
    g.lab(KNAME)
    if a.stamps:
        g.e(f"s_memrealtime s[{S_ST}:{S_ST+1}]")
    g.e("s_cmpk_ge_u32 s2, 0x100")
    g.e("s_cbranch_scc1 L_end")
    g.e(f"s_load_dwordx2 s[{SK}:{SK+1}], s[0:1], 8")

    def other_ptrs():
        g.e(f"s_load_dwordx2 s[{SQ}:{SQ+1}], s[0:1], 0")
        g.e(f"s_load_dwordx2 s[{SW}:{SW+1}], s[0:1], 40")
        g.e(f"s_load_dwordx2 s[{SV}:{SV+1}], s[0:1], 16")
        g.e(f"s_load_dwordx2 s[{SO}:{SO+1}], s[0:1], 24")

    def other_setup():
        g.e(f"v_and_b32 v{vQ}, 7, v0")
        g.e(f"v_lshl_add_u32 v{vQ}, v{vQ}, 8, v{vA}")
        g.e(f"s_movk_i32 s{SQ+2}, 0x4000")
        g.e(f"s_mov_b32 s{SQ+3}, s{SK+3}")
        g.e(f"s_lshl_b32 s{SW+2}, 1, 28")
        g.e(f"s_mov_b32 s{SW+3}, s{SK+3}")
        g.e(f"s_lshl_b32 s{S_QOFF}, s{S_GRP}, 11")
        g.e(f"s_lshl_b32 s{S_EPO}, s{S_GRP}, 7")
        g.e(f"s_bitset1_b32 s{S_EPO}, 21")
        assert EPOCH_BASE == 1 << 21 and WS_BYTES == 1 << 28

    if not a.short:
        other_ptrs()
    if a.cpf:
        g.c("pull the kernel's own code into L2 (one line per lane of waves 0-1)")
        g.e("s_getpc_b64 s[50:51]")
        g.e(f"v_and_b32 v{vM}, 0x7f, v0")
        g.e(f"v_lshlrev_b32 v{vM}, 6, v{vM}")
        g.e(f"global_load_dword v{vNON-1}, v{vM}, s[50:51]")
    g.e(f"v_readfirstlane_b32 s{S_WAVE}, v0")
    if a.grpmode == "mod":
        g.e(f"s_and_b32 s{S_GRP}, s2, 7")
        g.e(f"s_lshr_b32 s{S_SPLIT}, s2, 3")
    else:
        g.e(f"s_lshr_b32 s{S_GRP}, s2, 5")
        g.e(f"s_and_b32 s{S_SPLIT}, s2, 31")
    g.c("K lane offset: key row 4*(l&3)+((l>>2)&1), 64-byte half (l>>3)&1, 16-byte chunk (l>>4)&3")
    g.e(f"v_and_b32 v{vB}, 48, v0")
    g.e(f"v_and_b32 v{vA}, 8, v0")
    g.e(f"v_lshl_add_u32 v{vA}, v{vA}, 3, v{vB}")
    g.e(f"v_and_b32 v{vB}, 3, v0")
    g.e(f"v_lshl_add_u32 v{vK}, v{vB}, 10, v{vA}")
    g.e(f"v_and_b32 v{vB}, 4, v0")
    g.e(f"v_lshl_add_u32 v{vK}, v{vB}, 6, v{vK}")
    g.e(f"s_lshl_b32 s{S_OFF}, s{S_GRP}, 23")
    g.e(f"s_lshl_b32 s{S_T0}, s{S_SPLIT}, 18")
    g.e(f"s_lshl_b32 s{S_T1}, s{S_WAVE}, 9")
    g.e(f"s_add_u32 s{S_OFF}, s{S_OFF}, s{S_T0}")
    g.e(f"s_add_u32 s{S_OFF}, s{S_OFF}, s{S_T1}")
    g.e(f"s_movk_i32 s{S_T0}, 0x1000")
    for t in range(1, NT):
        g.e(f"s_add_u32 s{S_OFF+t}, s{S_OFF+t-1}, s{S_T0}")
    if a.dma:
        g.e(f"s_lshl_b32 s{S_T1}, s{S_WAVE}, 6")
        g.e(f"s_add_u32 m0, s{S_T1}, 34816")
        g.e(f"v_and_b32 v{vM}, 63, v0")
        g.e(f"v_lshlrev_b32 v{vM}, 4, v{vM}")
    g.e(f"s_lshl_b32 s{SK+2}, 1, 26")
    g.e(f"s_mov_b32 s{SK+3}, 0x20000")
    if not a.short:
        other_setup()
    if a.prio:
        g.e("s_setprio 1" if a.prio == 2 else "s_setprio 3")
    g.e("s_waitcnt lgkmcnt(0)")
    stamp(g, a, 1)

    issued = []

    def issue(name, text):
        issued.append(name)
        g.e(text)

    def wait_for(names):
        last = max(issued.index(n) for n in names)
        n_after = len(issued) - 1 - last
        assert n_after <= 63
        g.e(f"s_waitcnt vmcnt({n_after})")

    free = list(range(POOL, 252 - 3, 4))
    kreg, vreg = {}, {}
    if a.spf:
        g.c("odd XCDs see a longer path to memory: their waiting waves pull a few K lines into L2 via the scalar path")
        g.e(f"s_getreg_b32 s{S_XCC}, hwreg(HW_REG_XCC_ID, 0, 4)")
        if a.spfx == "odd":
            g.e(f"s_bitcmp0_b32 s{S_XCC}, 0")
            g.e("s_cbranch_scc1 L_nospf")
        g.e(f"s_sub_u32 s{S_T1}, s{S_WAVE}, 64")
        g.e(f"s_cmp_ge_u32 s{S_T1}, {64*a.spfw}")
        g.e("s_cbranch_scc1 L_nospf")
        for i in range(a.spf):
            if i and i % 15 == 0:
                g.e("s_waitcnt lgkmcnt(0)")
            g.e(f"s_load_dword s{50+i%4}, s[{SK}:{SK+1}], s{S_OFF} offset:{128*i}")
        g.lab("L_nospf")
    g.c("---- K stream: one uninterrupted burst per wave keeps the CU's requests sequential ----")
    for t in range(NT):
        for j in range(4):
            r = free.pop(0)
            kreg[(t, j)] = r
            if "k" in a.dma:
                issue(("k", t, j), f"buffer_load_dwordx4 v{vM}, s[{SK}:{SK+3}], s{S_OFF+t} offen offset:{1024*j} nt lds")
            else:
                issue(("k", t, j), f"buffer_load_dwordx4 {q(r)}, v{vK}, s[{SK}:{SK+3}], s{S_OFF+t} offen offset:{512*(j//2)+128*(j%2)} nt")
            if a.prio == 2 and t == 0 and j == 0:
                g.e("s_setprio 3")
    if a.short:
        stamp(g, a, 12)
        if a.lat:
            g.e("s_waitcnt vmcnt(0)")
            stamp(g, a, 5)
        other_ptrs()
        other_setup()
        g.e("s_waitcnt lgkmcnt(0)")
    for j in range(2):
        issue(("q", j), f"buffer_load_dwordx4 {q(QR+4*j)}, v{vQ}, s[{SQ}:{SQ+3}], s{S_QOFF} offen offset:{128*j}")
    issue(("epo",), f"buffer_load_dword v{vNON}, off, s[{SW}:{SW+3}], s{S_EPO} sc1")
    if not a.short:
        stamp(g, a, 12)
    if a.prio:
        g.e("s_setprio 0")
    g.e(f"v_and_b32 v{vV}, 63, v0")
    g.e(f"v_lshlrev_b32 v{vV}, 4, v{vV}")
    g.e(f"s_lshr_b32 s{S_WAVE}, s{S_WAVE}, 6")
    for r, n in ((SV, 0x4000000), (SO, 16384)):
        g.e(f"s_mov_b32 s{r+2}, {n:#x}")
        g.e(f"s_mov_b32 s{r+3}, 0x20000")
    g.e(f"s_lshl_b32 s{S_POLL}, s{S_GRP}, 18")
    g.e(f"s_lshl_b32 s{S_T0}, s{S_SPLIT}, 13")
    g.e(f"s_add_u32 s{S_POLL}, s{S_POLL}, s{S_T0}")
    g.e(f"s_getreg_b32 s{S_XCC}, hwreg(HW_REG_XCC_ID, 0, 4)")
    cval = 1.4426950408889634 * (128 ** -0.5)
    g.e(f"s_mov_b32 s{S_C}, {f32bits(cval):#x}")
    g.e(f"s_mov_b32 s{S_SELLO}, 0x05040100")
    g.e(f"s_mov_b32 s{S_SELHI}, 0x07060302")
    g.e(f"s_mov_b32 s{S_NEG}, {f32bits(-3.0e38):#x}")
    g.c("LDS addresses: (max,sum) slot n*64 + w*8 ; O slot w*4096 + n*512 + g*128 + ((e^n)*16)")
    g.e(f"v_and_b32 v{vA}, 7, v0")
    g.e(f"s_lshl_b32 s{S_T0}, s{S_WAVE}, 3")
    g.e(f"v_lshl_add_u32 v{vB}, v{vA}, 6, s{S_T0}")
    g.e(f"v_and_b32 v{vK}, 15, v0")
    g.e(f"v_mul_u32_u24 v{vK}, 528, v{vK}")
    g.e(f"v_bfe_u32 v{vA}, v0, 4, 2")
    g.e(f"v_lshl_add_u32 v{vK}, v{vA}, 7, v{vK}")
    g.e(f"s_lshl_b32 s{S_T0}, s{S_WAVE}, 12")
    g.e(f"v_add_u32 v{vK}, s{S_T0}, v{vK}")

    D1 = [QR + 8, QR + 12]

    def merge(t):
        d0, d1 = SR + 4 * t, D1[t % 2]
        for r in range(4):
            g.e(f"v_permlane32_swap_b32 v{d0+r}, v{d1+r}")
        g.nop(1)
        for r in range(4):
            g.e(f"v_add_f32_dpp v{d0+r}, v{d1+r}, v{d0+r} row_ror:8 row_mask:0xf bank_mask:0xf")

    g.c("---- S = K.Q^T : rows = (8 keys x 2 halves of a 128-byte line), cols = (8 heads x 2 halves) ----")
    wait_for([("epo",)])
    for t in range(NT):
        g.e(f"v_mfma_f32_16x16x32_bf16 {q(SR+4*t)}, {q(kreg[(t,0)])}, {q(QR)}, 0")
        g.e(f"v_mfma_f32_16x16x32_bf16 {q(D1[t%2])}, {q(kreg[(t,2)])}, {q(QR)}, 0")
        g.e(f"v_mfma_f32_16x16x32_bf16 {q(SR+4*t)}, {q(kreg[(t,1)])}, {q(QR+4)}, {q(SR+4*t)}")
        g.e(f"v_mfma_f32_16x16x32_bf16 {q(D1[t%2])}, {q(kreg[(t,3)])}, {q(QR+4)}, {q(D1[t%2])}")
        for j in range(4):
            free.append(kreg[(t, j)])
        if t == 0:
            g.e(f"s_mov_b32 s{S_T0}, 0x9E3779B1")
            g.e(f"v_mul_lo_u32 v{vNON}, v{vNON}, s{S_T0}")
            g.e(f"v_add_u32 v{vNON}, 0x7F4A7C15, v{vNON}")
        if t == NT - 1:
            g.c("---- V stream (whole 32 KiB in one burst) ----")
            for n in range(8 * NB):
                r = free.pop(0)
                vreg[n] = r
                if "v" in a.dma or ("h" in a.dma and (n // 4) % 2):
                    issue(("v", n), f"buffer_load_dwordx4 v{vV}, s[{SV}:{SV+3}], s{S_OFF+n//4} offen offset:{1024*(n%4)} nt lds")
                else:
                    issue(("v", n), f"buffer_load_dwordx4 {q(r)}, v{vV}, s[{SV}:{SV+3}], s{S_OFF+n//4} offen offset:{1024*(n%4)} nt")
                if a.prio == 2 and n == 0:
                    g.e("s_setprio 2")
            if a.prio == 2:
                g.e("s_setprio 0")
            stamp(g, a, 4)
        elif t > 0:
            g.nop(4)
        if t > 0:
            merge(t - 1)
    merge(NT - 1)
    for j in range(4):
        free.append(QR + 4 * j)
    acc = [free.pop(0) for _ in range(8)]
    T = [free.pop(0), free.pop(0)]
    S = [SR + i for i in range(4 * NT)]
    g.c("---- softmax numerators with the wave's true max ----")
    g.e(f"v_max3_f32 v{vM}, v{S[0]}, v{S[1]}, s{S_NEG}")
    g.e(f"v_max3_f32 v{vL}, v{S[2]}, v{S[3]}, s{S_NEG}")
    for i in range(4, 4 * NT, 4):
        g.e(f"v_max3_f32 v{vM}, v{vM}, v{S[i]}, v{S[i+1]}")
        g.e(f"v_max3_f32 v{vL}, v{vL}, v{S[i+2]}, v{S[i+3]}")
    g.e(f"v_max_f32 v{vM}, v{vM}, v{vL}")
    g.e(f"v_mov_b32 v{vL}, v{vM}")
    g.nop(2)
    g.e(f"v_permlane32_swap_b32 v{vL}, v{vM}")
    g.e(f"v_max_f32 v{vM}, v{vM}, v{vL}")
    g.e(f"v_mov_b32 v{vL}, v{vM}")
    g.nop(2)
    g.e(f"v_permlane16_swap_b32 v{vL}, v{vM}")
    g.e(f"v_max_f32 v{vM}, v{vM}, v{vL}")
    g.e(f"v_mul_f32 v{vM}, s{S_C}, v{vM}")
    for s in S:
        g.e(f"v_fma_f32 v{s}, v{s}, s{S_C}, -v{vM}")
    for s in S:
        g.e(f"v_exp_f32 v{s}, v{s}")
    g.e(f"v_add_f32 v{vL}, v{S[0]}, v{S[1]}")
    g.e(f"v_add_f32 v{T[0]}, v{S[2]}, v{S[3]}")
    for i in range(4, 4 * NT, 2):
        g.e(f"v_add_f32 v{vL}, v{vL}, v{S[i]}")
        g.e(f"v_add_f32 v{T[0]}, v{T[0]}, v{S[i+1]}")
    g.e(f"v_add_f32 v{vL}, v{vL}, v{T[0]}")
    g.e(f"v_mov_b32 v{T[0]}, v{vL}")
    P = []
    for u in range(NB):
        b = SR + 8 * u
        for r in range(4):
            g.e(f"v_cvt_pk_bf16_f32 v{b+r}, v{b+2*r}, v{b+2*r+1}")
        P.append(b)
    g.e(f"v_permlane32_swap_b32 v{T[0]}, v{vL}")
    g.e(f"v_add_f32 v{vL}, v{vL}, v{T[0]}")
    g.e(f"v_mov_b32 v{T[0]}, v{vL}")
    g.nop(2)
    g.e(f"v_permlane16_swap_b32 v{T[0]}, v{vL}")
    g.e(f"v_add_f32 v{vL}, v{vL}, v{T[0]}")
    g.e("s_mov_b64 exec, 0xff")
    g.e(f"ds_write_b64 v{vB}, v[{vM}:{vL}] offset:{LDS_ML}")
    g.e("s_mov_b64 exec, -1")
    ad = [SR + 4 + i for i in range(4)] + [SR + 12 + i for i in range(4)]
    for e in range(8):
        g.e(f"v_xor_b32 v{ad[e]}, {16*e}, v{vK}")
    stamp(g, a, 6)
    g.c("barrier 1: waves 4-7 pass it here, waves 0-3 after their O is in LDS")
    g.e(f"s_cmp_lt_u32 s{S_WAVE}, 4")
    g.e("s_cbranch_scc1 L_early")
    g.e(f"s_and_b32 s{S_T0}, s{S_WAVE}, 3")
    g.e(f"s_lshl_b32 s{S_T0}, s{S_T0}, 11")
    g.e(f"s_add_u32 s{S_T0}, s{S_T0}, s{S_POLL}")
    g.e("s_waitcnt lgkmcnt(0)")
    g.e("s_barrier")
    g.c("pull this slice's hand-off lines into L2 so that the producers' stores land in it")
    g.e(f"buffer_load_dword v{vNON-2}, v{vV}, s[{SW}:{SW+3}], s{S_T0} offen")
    g.e(f"buffer_load_dword v{vNON-1}, v{vV}, s[{SW}:{SW+3}], s{S_T0} offen offset:1024")
    g.e("s_branch L_pv")
    g.lab("L_early")
    g.c("same number of memory operations on both paths (counted waits below)")
    issue(("d0",), f"buffer_load_dword v{vNON-2}, off, s[{SW}:{SW+3}], s{S_EPO}")
    issue(("d1",), f"buffer_load_dword v{vNON-1}, off, s[{SW}:{SW+3}], s{S_EPO}")
    g.lab("L_pv")
    g.c("---- O^T = V^T.P^T : V rows are transposed in registers with v_perm ----")
    for u in range(NB):
        wait_for([("v", 8 * u + 7)])
        if u == NB - 1:
            stamp(g, a, 7)
        L = [vreg[8 * u + i] for i in range(8)]
        for dw in range(4):
            for r in range(4):
                g.e(f"v_perm_b32 v{T[0]+r}, v{L[2*r+1]+dw}, v{L[2*r]+dw}, s{S_SELLO}")
            for r in range(4):
                g.e(f"v_perm_b32 v{T[1]+r}, v{L[2*r+1]+dw}, v{L[2*r]+dw}, s{S_SELHI}")
            for h in range(2):
                e = 2 * dw + h
                cin = "0" if u == 0 else q(acc[e])
                if h == 1:
                    g.nop(1)
                g.e(f"v_mfma_f32_16x16x32_bf16 {q(acc[e])}, {q(T[h])}, {q(P[u])}, {cin}")
    g.e("s_mov_b32 exec_lo, 0x00ff00ff")
    g.e("s_mov_b32 exec_hi, 0x00ff00ff")
    for e in range(8):
        g.e(f"ds_write_b128 v{ad[e]}, {q(acc[e])} offset:{LDS_O}")
    g.e("s_mov_b64 exec, -1")
    g.e("s_waitcnt lgkmcnt(0)")
    g.e("s_barrier")
    g.e(f"s_cmp_ge_u32 s{S_WAVE}, 4")
    g.e("s_cbranch_scc1 L_late")
    F = 8
    R = F + 2 * NW
    A, B = 60, 64
    g.c("---- waves 0-3: merge the 8 waves; thread t = n*32 + g*8 + e owns O[n][32g + 8r + e], r=0..3 ----")
    g.e(f"v_lshrrev_b32 v{vA}, 5, v0")
    g.e(f"v_lshlrev_b32 v{vL}, 6, v{vA}")
    for i in range(NW // 2):
        g.e(f"ds_read_b128 {q(F+4*i)}, v{vL} offset:{LDS_ML+16*i}")
    g.e(f"v_xor_b32 v{vB}, v{vA}, v0")
    g.e(f"v_and_b32 v{vB}, 7, v{vB}")
    g.e(f"v_lshrrev_b32 v{vK}, 3, v0")
    g.e(f"v_lshlrev_b32 v{vL}, 7, v{vK}")
    g.e(f"v_lshl_add_u32 v{vB}, v{vB}, 4, v{vL}")
    for w in range(4):
        g.e(f"ds_read_b128 {q(R+4*w)}, v{vB} offset:{LDS_O+4096*w}")
    g.e(f"v_and_b32 v{vA}, 7, v0")
    g.e(f"v_lshlrev_b32 v{vA}, 4, v{vA}")
    g.e(f"v_lshl_add_u32 v{vA}, v{vK}, 13, v{vA}")
    g.e(f"v_lshlrev_b32 v{vQ}, 4, v0")
    g.e(f"s_lshl_b32 s{S_T0}, s{S_GRP}, 18")
    g.e(f"s_lshl_b32 s{S_T1}, s{S_SPLIT}, 7")
    g.e(f"s_add_u32 s{S_T0}, s{S_T0}, s{S_T1}")
    g.e(f"s_add_u32 s{S_T1}, s{S_T0}, 4096")
    g.e("s_waitcnt lgkmcnt(4)")
    ms = [F + 2 * w for w in range(NW)]
    g.e(f"v_max3_f32 v{vM}, v{ms[0]}, v{ms[1]}, v{ms[2]}")
    g.e(f"v_max3_f32 v{vM}, v{vM}, v{ms[3]}, v{ms[4]}")
    g.e(f"v_max3_f32 v{vM}, v{vM}, v{ms[5]}, v{ms[6]}")
    g.e(f"v_max_f32 v{A+2}, v{vM}, v{ms[7]}")
    for m in ms:
        g.e(f"v_sub_f32 v{m}, v{m}, v{A+2}")
    for m in ms:
        g.e(f"v_exp_f32 v{m}, v{m}")
    g.e(f"v_mov_b32 v{A+3}, v{vNON}")
    g.e(f"v_mul_f32 v{vL}, v{F}, v{F+1}")
    for w in range(1, NW):
        g.e(f"v_fmac_f32 v{vL}, v{F+2*w}, v{F+2*w+1}")
    g.e(f"v_and_b32 v{B+2}, -16, v{vL}")
    g.e(f"v_or_b32 v{B+2}, s{S_XCC}, v{B+2}")
    g.e(f"v_mov_b32 v{B+3}, v{vNON}")

    def fma2(w):
        for h, D in ((0, A), (2, B)):
            if w == 0:
                g.e(f"v_pk_mul_f32 v[{D}:{D+1}], v[{R+h}:{R+h+1}], v[{F}:{F+1}] op_sel_hi:[1,0]")
            else:
                g.e(f"v_pk_fma_f32 v[{D}:{D+1}], v[{R+4*w+h}:{R+4*w+h+1}], v[{F+2*w}:{F+2*w+1}], v[{D}:{D+1}] op_sel_hi:[1,0,1]")
    g.e("s_waitcnt lgkmcnt(0)")
    for w in range(4):
        fma2(w)
    g.e("s_barrier")
    stamp(g, a, 8)
    for w in range(4, NW):
        g.e(f"ds_read_b128 {q(R+4*w)}, v{vB} offset:{LDS_O+4096*w}")
    for w in range(4, NW):
        g.e(f"s_waitcnt lgkmcnt({NW-1-w})")
        fma2(w)
    g.e(f"buffer_store_dwordx4 {q(A)}, v{vA}, s[{SW}:{SW+3}], s{S_T0} offen")
    g.e(f"buffer_store_dwordx4 {q(B)}, v{vA}, s[{SW}:{SW+3}], s{S_T1} offen")
    g.e(f"ds_write_b128 v{vQ}, {q(A)} offset:{LDS_O}")
    g.e(f"ds_write_b128 v{vQ}, {q(B)} offset:{LDS_O+4096}")
    g.e("s_waitcnt lgkmcnt(0)")
    g.e("s_branch L_done")
    g.lab("L_late")
    stamp(g, a, 8)
    if a.dry:
        g.c("wave 5 walks through the arithmetic of the final merge once (no memory access): warms the I-cache")
        g.e(f"s_cmp_eq_u32 s{S_WAVE}, 5")
        g.e("s_cbranch_scc1 L_polled")
    g.e(f"s_cmp_lg_u32 s{S_WAVE}, 4")
    g.e("s_cbranch_scc1 L_done")
    consumer(g, a)
    g.lab("L_done")
    if a.stamps:
        stamp(g, a, 9)
        flush_stamps(g, a, 14, 96)
    g.lab("L_end")
    g.e("s_endpgm")


def build(a):
    g = G()
    kernel(g, a)
    lds = LDS_O + 4096 * NW + (1024 + 32768 if a.dma else 0)
    out = HDR
    out += f"; @launch grid=(256,1,1) block=({NW*64},1,1) lds={lds}\n"
    out += '.amdgcn_target "amdgcn-amd-amdhsa--gfx950"\n.text\n'
    out += f".globl {KNAME}\n.p2align 8\n.type {KNAME},@function\n"
    out += "\n".join(g.l) + "\n"
    out += f""".section .rodata,"a"
.p2align 6
.amdhsa_kernel {KNAME}
  .amdhsa_next_free_vgpr 256
  .amdhsa_next_free_sgpr {100 if a.stamps else 56}
  .amdhsa_accum_offset 256
  .amdhsa_group_segment_fixed_size 0
  .amdhsa_kernarg_size 48
  .amdhsa_user_sgpr_count 2
  .amdhsa_user_sgpr_kernarg_segment_ptr 1
  .amdhsa_system_sgpr_workgroup_id_x 1
  .amdhsa_float_denorm_mode_32 3
.end_amdhsa_kernel
"""
    return out


if __name__ == "__main__":
    p = argparse.ArgumentParser()
    p.add_argument("--grpmode", default="mod")
    p.add_argument("--stamps", action="store_true")
    p.add_argument("--prio", type=int, default=1)
    p.add_argument("--near", type=int, default=24)
    p.add_argument("--short", type=int, default=1)
    p.add_argument("--cpf", type=int, default=0)
    p.add_argument("--dry", type=int, default=0)
    p.add_argument("--spf", type=int, default=0)
    p.add_argument("--spfw", type=int, default=3)
    p.add_argument("--spfx", default="odd")
    p.add_argument("--dma", default="")
    p.add_argument("--lat", type=int, default=0)
    p.add_argument("-o", default="/dev/stdout")
    a = p.parse_args()
    open(a.o, "w").write(build(a))
```
